```python
import torch

def _softmax(x, axis=-1):
    return torch.softmax(x, dim=axis)
def _gelu(x):
    return torch.nn.functional.gelu(x, approximate="tanh")
def _silu(x):
    return torch.nn.functional.silu(x)
def _sigmoid(x):
    return torch.sigmoid(x)
def _layernorm(x, axis=-1, eps=1e-5):
    m = x.mean(dim=axis, keepdim=True)
    v = x.var(dim=axis, keepdim=True, unbiased=False)
    return (x - m) / torch.sqrt(v + eps)
def _scatter_add(tgt, idx, src, axis=0):
    return tgt.clone().index_add_(axis, idx, src)
def _segment_sum(src, seg, n):
    out = torch.zeros((n,) + src.shape[1:], dtype=src.dtype)
    return out.index_add_(0, seg, src)
def _pad(x, pw):
    flat = tuple(v for pair in reversed(pw) for v in pair)
    return torch.nn.functional.pad(x, flat)

kernel_name = 'standalone__gqa_block_cached__near_ridge'

def setup_inputs():

    _w = (lambda a: (lambda t: t.to(torch.bfloat16) if t.is_floating_point() else t)(torch.as_tensor(a)))
    B, Sq, D = 8, 32, 1024
    Hq, Hkv, Sk, Dh = 32, 4, 1024, 128
    assert Hq % Hkv == 0, (Hq, Hkv)
    return {
        "x": _w((lambda *s: torch.randn(*s, dtype=torch.bfloat16) * 0.8)(B, Sq, D)),
        "k_cache": _w((lambda *s: torch.randn(*s, dtype=torch.bfloat16) * 0.8)(B, Hkv, Sk, Dh)),
        "v_cache": _w((lambda *s: torch.randn(*s, dtype=torch.bfloat16) * 0.05)(B, Hkv, Sk, Dh)),
        "wq": _w((lambda *s: torch.randn(*s, dtype=torch.bfloat16) * 0.8)(D, Hq * Dh) * (D ** -0.5)),
        "wo": _w((lambda *s: torch.randn(*s, dtype=torch.bfloat16) * 0.05)(Hq * Dh, D) * ((Hq * Dh) ** -0.5)),
    }

def reference(x, k_cache, v_cache, wq, wo):
    B, Sq, D = x.shape
    Hq, Dh = 32, 128
    Hkv = k_cache.shape[1]
    rep = Hq // Hkv
    q = (lambda x, *d: x.permute(*d))((x @ wq).reshape(B, Sq, Hq, Dh), 0, 2, 1, 3)
    k = (lambda x, n, axis: torch.repeat_interleave(x, n, dim=axis))(k_cache, rep, axis=1)
    v = (lambda x, n, axis: torch.repeat_interleave(x, n, dim=axis))(v_cache, rep, axis=1)
    scores = torch.einsum("bhqd,bhkd->bhqk", q, k) * (Dh ** -0.5)
    p = _softmax(scores, axis=-1)
    o = torch.einsum("bhqk,bhkd->bhqd", p, v)
    return (lambda x, *d: x.permute(*d))(o, 0, 2, 1, 3).reshape(B, Sq, Hq * Dh) @ wo
```

```python
import re

REG_RE = re.compile(r'\b([vas])\[(\d+):(\d+)\]|\b([vas])(\d+)\b|\b(vcc|exec|m0|scc)\b')

def regs_of(tok):
    out = []
    for m in REG_RE.finditer(tok):
        if m.group(1):
            out += [(m.group(1), i) for i in range(int(m.group(2)), int(m.group(3)) + 1)]
        elif m.group(4):
            out.append((m.group(4), int(m.group(5))))
        else:
            out.append((m.group(6), 0))
    return out

TRANS = ("v_exp_f32", "v_log_f32", "v_rcp_f32", "v_rsq_f32", "v_sqrt_f32", "v_sin_f32", "v_cos_f32")
NODST_S = ("s_cmp", "s_waitcnt", "s_barrier", "s_nop", "s_branch", "s_cbranch", "s_setprio", "s_sleep", "s_endpgm", "s_bitcmp", "s_setpc")

class Ins:
    __slots__ = ("text", "op", "kind", "w", "r", "ldsr", "ldsw", "note")
    def __init__(self, text, ldsr=None, ldsw=None):
        self.text = text; self.ldsr = ldsr; self.ldsw = ldsw
        t = text.split(";")[0].strip()
        self.op = t.split()[0] if t else ""
        rest = t[len(self.op):]
        ops = [o.strip() for o in rest.split(",")] if rest.strip() else []
        op = self.op
        w = []; r = []
        if t.endswith(":") or op.startswith("."):
            self.kind = "label"
        elif op.startswith("v_mfma"):
            self.kind = "mfma"; w = regs_of(ops[0]); r = sum((regs_of(o) for o in ops[1:]), [])
        elif op.startswith("v_"):
            self.kind = "trans" if op.startswith(TRANS) else "valu"
            if op.startswith("v_permlane") and "swap" in op:
                w = regs_of(ops[0]) + regs_of(ops[1]); r = list(w)
            elif op.startswith("v_cmp"):
                w = regs_of(ops[0]); r = sum((regs_of(o) for o in ops[1:]), [])
            elif op.startswith(("v_add_co", "v_addc_co", "v_sub_co")):
                w = regs_of(ops[0]) + regs_of(ops[1]); r = sum((regs_of(o) for o in ops[2:]), [])
            else:
                w = regs_of(ops[0]); r = sum((regs_of(o) for o in ops[1:]), [])
                if op.startswith(("v_fmac", "v_pk_fmac", "v_dot2c")): r += w
                if op.startswith("v_cndmask") and len(ops) == 3: r.append(("vcc", 0))
        elif op.startswith("ds_read") or op.startswith("ds_bpermute") or op.startswith("ds_swizzle"):
            self.kind = "dsr"; w = regs_of(ops[0]); r = sum((regs_of(o) for o in ops[1:]), [])
        elif op.startswith("ds_write"):
            self.kind = "dsw"; r = sum((regs_of(o) for o in ops), [])
        elif op.startswith(("buffer_load", "global_load")):
            if op.startswith("global_load_lds") or re.search(r'\blds\b', t):
                self.kind = "dma"; r = sum((regs_of(o) for o in ops), []) + [("m0", 0)]
            else:
                self.kind = "vld"; w = regs_of(ops[0]); r = sum((regs_of(o) for o in ops[1:]), [])
        elif op.startswith(("buffer_store", "global_store")):
            self.kind = "vst"; r = sum((regs_of(o) for o in ops), [])
        elif op.startswith(("buffer_atomic", "global_atomic")):
            self.kind = "vst"; r = sum((regs_of(o) for o in ops), [])
            if " sc0" in t: self.kind = "vld"; w = regs_of(ops[0])
        elif op.startswith(("buffer_wbl2", "buffer_inv")):
            self.kind = "vst"
        elif op.startswith(("s_load", "s_memtime", "s_memrealtime")):
            self.kind = "smem"; w = regs_of(ops[0]); r = sum((regs_of(o) for o in ops[1:]), [])
        elif op.startswith("s_"):
            self.kind = "salu"
            if op.startswith(NODST_S):
                r = sum((regs_of(o) for o in ops), [])
                if op.startswith("s_cbranch_vcc"): r.append(("vcc", 0))
            else:
                w = regs_of(ops[0]); r = sum((regs_of(o) for o in ops[1:]), [])
                if "saveexec" in op: w.append(("exec", 0))
        else:
            raise ValueError("unknown instr: " + text)
        self.w = set(w); self.r = set(r)

def overlap(a, b):
    if a is None or b is None: return False
    return a[0] < b[1] and b[0] < a[1]

class Asm:
    def __init__(self, auto=True):
        self.out = []
        self.vm = []
        self.lg = []
        self.smem = set()
        self.auto = auto
        self.nnop = 0
    def _wait(self, vm=None, lg=None):
        parts = []
        if vm is not None and vm < len(self.vm):
            assert vm <= 63
            parts.append(f"vmcnt({vm})"); self.vm = self.vm[len(self.vm) - vm:] if vm else []
        if lg is not None and lg < len(self.lg):
            n = min(lg, 15)
            parts.append(f"lgkmcnt({n})"); self.lg = self.lg[len(self.lg) - n:] if n else []
        if parts: self._emit(Ins("s_waitcnt " + " ".join(parts)))
    def wait_vm(self, n): self._wait(vm=n)
    def wait_lg(self, n): self._wait(lg=n)
    def wait_all(self):
        self._emit(Ins("s_waitcnt vmcnt(0) lgkmcnt(0)")); self.vm = []; self.lg = []; self.smem = set()
    def wait_lg0(self):
        self._emit(Ins("s_waitcnt lgkmcnt(0)")); self.lg = []; self.smem = set()
    def wait_vm_for(self, ins):
        if ins in self.vm: self._wait(vm=len(self.vm) - 1 - self.vm.index(ins))
    def wait_stores(self):
        idx = [i for i, p in enumerate(self.vm) if p.kind == "vst"]
        if idx: self._wait(vm=len(self.vm) - 1 - idx[-1])
    def _auto_waits(self, I):
        touch = I.r | I.w
        needv = None; needl = None
        for i, p in enumerate(self.vm):
            dep = bool(p.w & touch)
            if p.kind == "dma" and (overlap(p.ldsw, I.ldsr) or overlap(p.ldsw, I.ldsw)): dep = True
            if dep: needv = len(self.vm) - 1 - i
        for i, p in enumerate(self.lg):
            dep = bool(p.w & touch)
            if p.kind == "dsr" and overlap(p.ldsr, I.ldsw): dep = True
            if p.kind == "dsw" and I.kind == "dma" and overlap(p.ldsw, I.ldsw): dep = True
            if dep: needl = len(self.lg) - 1 - i
        if self.smem & touch:
            self._emit(Ins("s_waitcnt lgkmcnt(0)")); self.lg = []; self.smem = set(); needl = None
        if needv is not None or needl is not None:
            self._wait(vm=needv, lg=needl)
    def _need_states(self, I):
        need = 0; dist = 0
        for P in reversed(self.out):
            if P.kind == "label": continue
            if dist >= 20: break
            req = 0
            if P.kind == "mfma":
                passes = 8 if "32x32" in P.op else 4
                big = {8: 12, 4: 8}[passes]
                if I.kind == "mfma":
                    ops = [o.strip() for o in I.text.split(";")[0].strip()[len(I.op):].split(",")]
                    ab = set(regs_of(ops[1]) + regs_of(ops[2])); c = set(regs_of(ops[3]))
                    if P.w & ab: req = max(req, big)
                    if (P.w & c) and P.w != c: req = max(req, {8: 10, 4: 6}[passes])
                    if (P.w & I.w) and P.w != c: req = max(req, big)
                elif I.kind in ("valu", "trans", "dsr", "dsw", "vld", "vst", "dma"):
                    if P.w & (I.r | I.w): req = max(req, big)
                    pops = [o.strip() for o in P.text.split(";")[0].strip()[len(P.op):].split(",")]
                    if I.kind in ("valu", "trans") and set(regs_of(pops[3])) & I.w: req = max(req, {8: 7, 4: 3}[passes])
            if P.kind in ("valu", "trans"):
                vw = {x for x in P.w if x[0] in "va"}
                sw = {x for x in P.w if x[0] == "s" or x[0] == "vcc"}
                if I.kind == "mfma" and vw & I.r: req = max(req, 2)
                if I.op.startswith("v_permlane") and vw & I.r: req = max(req, 2)
                if "dpp" in I.text and vw & I.r: req = max(req, 2)
                if I.op.startswith(("v_readfirstlane", "v_readlane")) and vw & I.r: req = max(req, 1)
                if P.kind == "trans" and I.kind == "valu" and vw & I.r: req = max(req, 1)
                if I.kind in ("vld", "vst", "dma") and sw & I.r: req = max(req, 5)
                if I.kind in ("valu", "trans") and sw & I.r: req = max(req, 2)
                if I.kind == "salu" and sw & I.r: req = max(req, 1)
                if ("exec", 0) in P.w and I.kind == "mfma": req = max(req, 4)
            if P.kind == "salu" and ("m0", 0) in P.w and I.kind == "dma": req = max(req, 1)
            if P.kind == "vst" and ("x4" in P.op or "x3" in P.op) and I.kind in ("valu", "trans", "dsr", "vld", "mfma"):
                if {x for x in P.r if x[0] in "va"} & I.w: req = max(req, 2)
            if req > dist: need = max(need, req - dist)
            if P.op == "s_nop": dist += int(P.text.split()[1]) + 1
            else: dist += 1
        return need
    def _emit(self, I): self.out.append(I)
    def I(self, text, ldsr=None, ldsw=None):
        last = None
        for line in text.split("\n"):
            line = line.strip()
            if not line: continue
            I = Ins(line, ldsr, ldsw)
            if I.kind != "label":
                if self.auto: self._auto_waits(I)
                n = self._need_states(I)
                if n:
                    assert n <= 16
                    self._emit(Ins(f"s_nop {n-1}")); self.nnop += n
            if I.op == "s_waitcnt":
                raise ValueError("use wait_* helpers")
            self._emit(I)
            if I.kind in ("vld", "vst", "dma"): self.vm.append(I)
            elif I.kind in ("dsr", "dsw"): self.lg.append(I)
            elif I.kind == "smem": self.smem |= I.w
            last = I
        return last
    def raw(self, text): self._emit(Ins(text))
    def barrier(self):
        idx = [i for i, p in enumerate(self.lg)]
        if idx: self._wait(lg=0)
        self._emit(Ins("s_barrier"))
    def text(self): return "\n".join(("" if i.kind == "label" else "  ") + i.text for i in self.out)
    def stats(self):
        d = {}
        for i in self.out: d[i.kind] = d.get(i.kind, 0) + 1
        return d
```

```python
import sys, math
from asmlib import Asm

KNAME = "standalone__gqa_block_cached__near_ridge_kernel"
R = 24
WAVE_LDS = 40960
SCR = 24576
WS_O, WS_P, WS_F1, WS_F2, WS_E, WS_STAMP = 0, 2 << 20, 6 << 20, (6 << 20) + 65536, (6 << 20) + 131072, 8 << 20
X, K, V, WQ, WO, OUT, WS = 20, 24, 28, 32, 36, 40, 44
sW, sI, sJ, sG, sJB, sB, sHL, sH, sWB = 50, 51, 52, 53, 54, 55, 56, 57, 58
sXB, sQB, sKV, sOB, sOF, sT, sT2, sF, sE, sT3, sC = 59, 60, 61, 62, 63, 64, 65, 66, 67, 68, 69
vA, vB = 1, 2
vDQ, vDK, vDV, vDO, vRK, vRQ, vRV = 8, 12, 16, 17, 21, 29, 33
vM, vL, vT = 37, 38, 39
vP, vMC, vLT = 40, 48, 56
ACC, S0 = 64, 128
QOWN = 80
aX, aWQ, aQ, aK, aV = 0, 64, 96, 128, 192

def srd(r): return f"s[{r}:{r+3}]"
def vr(a, n): return f"v[{a}:{a+n-1}]"
def ar(a, n): return f"a[{a}:{a+n-1}]"

class Stream:
    def __init__(self, E):
        self.E = E; self.groups = []; self.pos = 0; self.head = 0; self.freed = 0; self.slot = {}; self.limit = None
    def add(self, name, n, fn): self.groups.append((name, n, fn))
    def service(self, maxg=99):
        cnt = 0
        while self.pos < len(self.groups) and cnt < maxg:
            name, n, fn = self.groups[self.pos]
            if self.head + n > self.freed + R: break
            s = self.head % R
            assert s + n <= R
            self.slot[name] = s
            fn(s); self.head += n; self.pos += 1; cnt += 1
    def free(self, n): self.freed += n

class Gen:
    def __init__(self, cfg):
        self.cfg = cfg; self.E = Asm(); self.nst = 0
    def aux(self, what): return self.cfg.get("aux_" + what, self.cfg.get("aux", ""))
    def stamp(self):
        if self.cfg.get("stamps"):
            r = 70 + 2 * self.nst; assert r <= 98
            self.E.I(f"s_memrealtime s[{r}:{r+1}]"); self.nst += 1
    def write_stamps(self, kidx=0):
        if not self.cfg.get("stamps"): return
        E = self.E
        self.stamp()
        E.wait_all()
        E.I(f"s_lshl_b32 s{sT}, s2, 2\ns_add_u32 s{sT}, s{sT}, s{sW}\ns_lshl_b32 s{sT}, s{sT}, 6\ns_add_u32 s{sT}, s{sT}, {WS_STAMP + kidx*65536}")
        E.I("v_mov_b32 v5, 0")
        for i in range(self.nst):
            E.I(f"v_mov_b32 v6, s{70+2*i}")
            E.I(f"buffer_store_dword v6, v5, {srd(WS)}, s{sT} offen offset:{4*i}")
        E.wait_all()

    def prologue(self, parts, label):
        E = self.E; I = E.I
        I(f"s_cmp_lt_u32 s2, 256\ns_cbranch_scc1 {label}_go\ns_endpgm\n{label}_go:")
        self.stamp()
        ptr = dict(x=(X, 0, 524288), k=(K, 8, 8388608), v=(V, 16, 8388608), wq=(WQ, 24, 8388608), wo=(WO, 32, 8388608),
                   out=(OUT, 40, 524288), ws=(WS, 56, 268435456))
        for p in parts:
            r, off, size = ptr[p]
            I(f"s_load_dwordx2 s[{r}:{r+1}], s[0:1], {off}")
        I("v_lshrrev_b32 v5, 6, v0\nv_and_b32 v0, 63, v0")
        I(f"v_readfirstlane_b32 s{sW}, v5")
        for p in parts:
            r, off, size = ptr[p]
            I(f"s_mov_b32 s{r+2}, {size}\ns_mov_b32 s{r+3}, 0x20000")
        I(f"s_and_b32 s{sI}, s2, 7\ns_lshr_b32 s{sJ}, s2, 3\ns_and_b32 s{sG}, s{sI}, 3\ns_lshr_b32 s{sJB}, s{sJ}, 3")
        I(f"s_and_b32 s{sB}, s{sI}, 4\ns_add_u32 s{sB}, s{sB}, s{sJB}\ns_and_b32 s{sHL}, s{sJ}, 7")
        I(f"s_lshl_b32 s{sH}, s{sG}, 3\ns_add_u32 s{sH}, s{sH}, s{sHL}\ns_mul_i32 s{sWB}, s{sW}, {WAVE_LDS}")
        I(f"s_lshl_b32 s{sT2}, s{sB}, 2\ns_add_u32 s{sT2}, s{sT2}, s{sG}")
        I(f"s_lshl_b32 s{sKV}, s{sT2}, 18\ns_lshl_b32 s{sT}, s{sW}, 16\ns_or_b32 s{sKV}, s{sKV}, s{sT}\ns_lshl_b32 s{sT}, s{sHL}, 13\ns_or_b32 s{sKV}, s{sKV}, s{sT}")
        I(f"s_lshl_b32 s{sOF}, s{sT2}, 16\ns_lshl_b32 s{sT}, s{sW}, 14\ns_or_b32 s{sOF}, s{sOF}, s{sT}\ns_lshl_b32 s{sT}, s{sJB}, 12\ns_or_b32 s{sOF}, s{sOF}, s{sT}")
        I(f"s_lshl_b32 s{sXB}, s{sB}, 16\ns_lshl_b32 s{sT}, s{sW}, 9\ns_or_b32 s{sXB}, s{sXB}, s{sT}")
        I(f"s_lshl_b32 s{sQB}, s{sW}, 21\ns_lshl_b32 s{sT}, s{sJB}, 19\ns_or_b32 s{sQB}, s{sQB}, s{sT}\ns_lshl_b32 s{sT}, s{sH}, 8\ns_or_b32 s{sQB}, s{sQB}, s{sT}")
        I(f"s_lshl_b32 s{sOB}, s{sG}, 21\ns_lshl_b32 s{sT}, s{sW}, 19\ns_or_b32 s{sOB}, s{sOB}, s{sT}\ns_lshl_b32 s{sT}, s{sJB}, 17\ns_or_b32 s{sOB}, s{sOB}, s{sT}\ns_lshl_b32 s{sT}, s{sHL}, 8\ns_or_b32 s{sOB}, s{sOB}, s{sT}")
        I(f"s_mov_b32 s{sC}, {f32hex(128 ** -0.5 * math.log2(math.e))}")

    def dma_addr_x(self):
        I = self.E.I
        I(f"v_lshrrev_b32 v5, 5, v0\nv_and_b32 v6, 31, v0\nv_xor_b32 v6, v5, v6\ns_lshl_b32 s{sT}, s{sJB}, 3\nv_xor_b32 v6, s{sT}, v6")
        I(f"v_lshlrev_b32 v6, 4, v6\nv_lshl_add_u32 v128, v5, 11, v6")
        for i in range(1, 8): I(f"v_xor_b32 v{128+i}, {i << 5}, v128")
    def dma_addr_16(self):
        I = self.E.I
        I("v_lshrrev_b32 v5, 4, v0\nv_and_b32 v6, 15, v0\nv_lshlrev_b32 v7, 2, v5\nv_xor_b32 v7, v7, v6\nv_lshlrev_b32 v7, 4, v7")
    def dma_addr_wq(self):
        I = self.E.I
        I(f"v_lshl_add_u32 v{vDQ}, v5, 13, v7")
        for ii in range(1, 4): I(f"v_add_u32 v{vDQ+ii}, {ii*(32768-1024)}, v{vDQ}")
    def dma_addr_wo(self):
        I = self.E.I
        I(f"v_lshl_add_u32 v{vDO}, v5, 11, v7")
        for ii in range(1, 4): I(f"v_add_u32 v{vDO+ii}, {ii*(8192-1024)}, v{vDO}")
    def dma_addr_kv(self):
        I = self.E.I
        I(f"v_lshl_add_u32 v{vDV}, v5, 8, v7")
        I(f"v_xor_b32 v{vDK}, v5, v6\nv_lshlrev_b32 v{vDK}, 4, v{vDK}\nv_lshl_add_u32 v{vDK}, v5, 8, v{vDK}")
        for ii in range(1, 4): I(f"v_xor_b32 v{vDK+ii}, {ii << 6}, v{vDK}")
    def read_addr_tr(self, which):
        I = self.E.I
        I("v_bfe_u32 v5, v0, 2, 2")
        I("v_lshrrev_b32 v6, 5, v0")
        if which == "q":
            base = vRQ
            I("v_lshl_add_u32 v6, v6, 3, v5")
            I("v_and_b32 v7, 1, v0\nv_lshlrev_b32 v7, 4, v7\nv_bfe_u32 v39, v0, 1, 1\nv_lshl_add_u32 v7, v39, 3, v7")
        else:
            base = vRV
            I("v_lshl_add_u32 v6, v6, 2, v5")
            I("v_and_b32 v7, 3, v0\nv_lshlrev_b32 v7, 3, v7")
        I("v_bfe_u32 v39, v0, 4, 1\nv_lshl_add_u32 v7, v39, 5, v7")
        I(f"v_lshl_add_u32 v7, v6, 8, v7\nv_add_u32 v7, s{sWB}, v7")
        I(f"v_xor_b32 v5, s{sW}, v5\nv_lshl_add_u32 v{base}, v5, 6, v7")
        for ia in range(1, 4): I(f"v_xor_b32 v{base+ia}, {ia << 6}, v{base}")
    def read_addr_k(self):
        I = self.E.I
        I("v_and_b32 v5, 31, v0\nv_lshrrev_b32 v6, 5, v0\nv_and_b32 v7, 15, v0\nv_xor_b32 v6, v6, v7\nv_lshlrev_b32 v6, 4, v6")
        I(f"s_lshl_b32 s{sT}, s{sW}, 6\nv_xor_b32 v6, s{sT}, v6")
        I(f"v_lshl_add_u32 v6, v5, 8, v6\nv_add_u32 v{vRK}, s{sWB}, v6")
        for s in range(1, 8): I(f"v_xor_b32 v{vRK+s}, {s << 5}, v{vRK}")
    def read_addr_x(self):
        I = self.E.I
        I("v_and_b32 v5, 31, v0\nv_lshrrev_b32 v6, 5, v0\nv_and_b32 v7, 15, v0\nv_xor_b32 v6, v6, v7\nv_lshlrev_b32 v6, 4, v6")
        I(f"v_lshl_add_u32 v6, v5, 9, v6\nv_add_u32 v136, s{sWB}, v6")
        for s in range(1, 8): I(f"v_xor_b32 v{136+s}, {s << 5}, v136")
    def scratch_addr(self):
        I = self.E.I
        I(f"v_lshlrev_b32 v5, 4, v0\nv_add_u32 v5, {SCR}, v5\nv_add_u32 v{vA}, s{sWB}, v5")
        for ia in range(1, 4):
            I(f"s_xor_b32 s{sT}, s{sW}, {ia}\ns_mul_i32 s{sT}, s{sT}, {WAVE_LDS}\nv_add_u32 v{vA+ia}, s{sT}, v5")

    def add_x(self, st):
        I = self.E.I
        def mk(i):
            def f(slot):
                I(f"s_add_u32 m0, s{sWB}, {slot*1024}\ns_add_u32 s{sT}, s{sXB}, {i*4096}")
                I(f"buffer_load_dwordx4 v{128 + i % 8}, {srd(X)}, s{sT} offen {self.aux('x')} lds", ldsw=(slot*1024, slot*1024+1024))
            return f
        for i in range(16): st.add(("x", i), 1, mk(i))
    def group4(self, srdr, base, xorv, vregs, aux):
        I = self.E.I
        def f(slot):
            I(f"s_add_u32 m0, s{sWB}, {slot*1024}\ns_xor_b32 s{sT}, s{base}, {xorv}")
            for ii in range(4):
                o = f" offset:{ii*1024}" if ii else ""
                I(f"buffer_load_dwordx4 v{vregs[ii]}, {srd(srdr)}, s{sT} offen{o} {aux} lds", ldsw=((slot+ii)*1024, (slot+ii+1)*1024))
        return f
    def add_wq(self, st):
        for t in range(16): st.add(("wq", t), 4, self.group4(WQ, sQB, t << 17, [vDQ+i for i in range(4)], self.aux("wq")))
    def add_k(self, st):
        for t in range(8):
            for hh in range(2): st.add(("k", t, hh), 4, self.group4(K, sKV, (t << 13) | (hh << 12), [vDK+i for i in range(4)], self.aux("k")))
    def add_v(self, st):
        for u in range(16): st.add(("v", u), 4, self.group4(V, sKV, u << 12, [vDV]*4, self.aux("v")))
    def add_wo(self, st):
        for t in range(16): st.add(("wo", t), 4, self.group4(WO, sOB, t << 15, [vDO+i for i in range(4)], self.aux("wo")))

    def tr_reads(self, slot, addr, dst, jjstep):
        out = []
        for ia in range(4):
            for jj in range(2):
                out.append((f"ds_read_b64_tr_b16 {ar(dst + 4*ia + 2*jj, 2)}, v{addr+ia} offset:{slot*1024 + jj*jjstep}", (slot*1024, slot*1024+4096)))
        return out
    def emit_reads(self, lst):
        for t, rng in lst: self.E.I(t, ldsr=rng)

    def phase_q(self, st):
        E = self.E; I = E.I
        self.read_addr_x(); self.read_addr_tr("q")
        self.read_addr_k(); self.read_addr_tr("v"); self.scratch_addr()
        E.wait_lg0()
        for s in range(16):
            I(f"ds_read_b128 {ar(aX + 4*s, 4)}, v{136 + s % 8} offset:{(s // 8) * 256}", ldsr=(0, 16384))
        self.emit_reads(self.tr_reads(st.slot[("wq", 0)], vRQ, aWQ, 1024))
        st.free(16); st.service()
        self.stamp()
        for t in range(16):
            if t + 1 < 16:
                self.emit_reads(self.tr_reads(st.slot[("wq", t+1)], vRQ, aWQ + 16*((t+1) % 2), 1024))
            st.free(4); st.service()
            order = [1, 2, 3, 0] if t == 15 else range(4)
            for ia in order:
                c = "0" if t == 0 else vr(ACC + 16*ia, 16)
                I(f"v_mfma_f32_32x32x16_bf16 {vr(ACC + 16*ia, 16)}, {ar(aWQ + 16*(t % 2) + 4*ia, 4)}, {ar(aX + 4*t, 4)}, {c}")
        self.stamp()
        self.emit_reads(self.k_reads(st, 0))
        for ia in range(1, 4):
            for rq in range(4):
                o = (ia-1)*4096 + rq*1024
                I(f"ds_write_b128 v{vA}, {vr(ACC + 16*ia + 4*rq, 4)} offset:{o}")
        E.barrier()
        for ia in range(1, 4):
            for rq in range(4):
                o = (ia-1)*4096 + rq*1024
                I(f"ds_read_b128 {vr(S0 + 16*(ia-1) + 4*rq, 4)}, v{vA+ia} offset:{o}")
        for ia in range(1, 4):
            for r in range(16):
                I(f"v_add_f32 v{ACC+r}, v{ACC+r}, v{S0 + 16*(ia-1) + r}")
        for d in range(8):
            I(f"v_cvt_pk_bf16_f32 v{QOWN+d}, v{ACC+2*d}, v{ACC+2*d+1}")
        for s in range(2):
            I(f"ds_write_b128 v{vA}, {vr(QOWN + 4*s, 4)} offset:{12288 + s*1024}")
        E.barrier()
        for ia in range(1, 4):
            for s in range(2):
                I(f"ds_read_b128 {ar(aQ + 8*(ia-1) + 4*s, 4)}, v{vA+ia} offset:{12288 + s*1024}")
        self.stamp()
    def k_reads(self, st, t):
        slot = st.slot[("k", t, 0)]
        assert st.slot[("k", t, 1)] == slot + 4
        return [(f"ds_read_b128 {ar(aK + 32*(t % 2) + 4*s, 4)}, v{vRK+s} offset:{slot*1024}", (slot*1024, slot*1024 + 8192)) for s in range(8)]
    def qfrag(self, s):
        return vr(QOWN + 4*s, 4) if s < 2 else ar(aQ + 4*(s-2), 4)

    def softmax_ops(self, t, mcreg=None):
        s = S0 + 16*t
        mx = [f"v_max3_f32 v{vMC+t}, v{s}, v{s+1}, v{s+2}"]
        for i in range(3, 15, 2): mx.append(f"v_max3_f32 v{vMC+t}, v{vMC+t}, v{s+i}, v{s+i+1}")
        mx.append(f"v_max_f32 v{vMC+t}, v{vMC+t}, v{s+15}")
        mx.append(f"v_mul_f32 v{vMC+t}, s{sC}, v{vMC+t}")
        mc = mcreg if mcreg is not None else vMC + t
        ex = []
        for h in range(2):
            b = s + 8*h
            ex += [f"v_fma_f32 v{b+i}, v{b+i}, s{sC}, -v{mc}" for i in range(8)]
            ex += [f"v_exp_f32 v{b+i}, v{b+i}" for i in range(8)]
        sm = [f"v_add_f32 v{vLT+t}, v{s}, v{s+1}", f"v_add_f32 v{vT}, v{s+2}, v{s+3}"]
        for i in range(4, 16, 2):
            sm += [f"v_add_f32 v{vLT+t}, v{vLT+t}, v{s+i}", f"v_add_f32 v{vT}, v{vT}, v{s+i+1}"]
        sm.append(f"v_add_f32 v{vLT+t}, v{vLT+t}, v{vT}")
        return mx, ex, sm

    def interleave(self, mf, fill):
        I = self.E.I
        n = len(mf); k = len(fill); j = 0
        for i, m in enumerate(mf):
            I(m)
            upto = (k * (i + 1)) // n
            while j < upto:
                f = fill[j]; j += 1
                if callable(f): f()
                elif isinstance(f, tuple): I(f[0], ldsr=f[1])
                else: I(f)

    def phase_s(self, st):
        E = self.E; I = E.I
        for t in range(8):
            fill = []
            if t + 1 < 8: self.emit_reads(self.k_reads(st, t+1))
            else: self.emit_reads(self.tr_reads(st.slot[("v", 0)], vRV, aV, 2048))
            st.free(8); st.service()
            mf = []
            for s in range(8):
                c = "0" if s == 0 else vr(S0 + 16*t, 16)
                mf.append(f"v_mfma_f32_32x32x16_bf16 {vr(S0 + 16*t, 16)}, {ar(aK + 32*(t % 2) + 4*s, 4)}, {self.qfrag(s)}, {c}")
            if t >= 1:
                mx, ex, sm = self.softmax_ops(t-1)
                fill = mx + ex + sm
            self.interleave(mf, fill)
        self.stamp()
        mx, ex, sm = self.softmax_ops(7, mcreg=vM)
        for x in mx: I(x)
        I(f"v_max3_f32 v{vM}, v{vMC}, v{vMC+1}, v{vMC+2}\nv_max3_f32 v{vM}, v{vM}, v{vMC+3}, v{vMC+4}\nv_max3_f32 v{vM}, v{vM}, v{vMC+5}, v{vMC+6}")
        I(f"v_max_f32 v{vM}, v{vM}, v{vMC+7}\nv_mov_b32 v{vT}, v{vM}")
        I(f"v_permlane32_swap_b32 v{vM}, v{vT}\nv_max_f32 v{vM}, v{vM}, v{vT}")
        for t in range(7): I(f"v_sub_f32 v{vMC+t}, v{vMC+t}, v{vM}")
        for t in range(7): I(f"v_exp_f32 v{vMC+t}, v{vMC+t}")
        self.pend = ex + sm
    def p_ops(self, u):
        t, ks = divmod(u, 2); s = S0 + 16*t + 8*ks; p = vP + 4*(u % 2)
        ops = []
        if t < 7: ops += [f"v_mul_f32 v{s+i}, v{vMC+t}, v{s+i}" for i in range(8)]
        ops += [f"v_cvt_pk_bf16_f32 v{p+d}, v{s+2*d}, v{s+2*d+1}" for d in range(4)]
        return ops
    def phase_pv(self, st):
        E = self.E; I = E.I
        for x in self.p_ops(0): I(x)
        pend = list(self.pend)
        lsum = [f"v_mul_f32 v{vL}, v{vMC}, v{vLT}"] + [f"v_fmac_f32 v{vL}, v{vMC+t}, v{vLT+t}" for t in range(1, 7)] + [f"v_add_f32 v{vL}, v{vL}, v{vLT+7}"]
        pend += lsum
        per = 10
        for u in range(16):
            if u + 1 < 16: self.emit_reads(self.tr_reads(st.slot[("v", u+1)], vRV, aV + 16*((u+1) % 2), 2048))
            st.free(4); st.service()
            mf = []
            order = [1, 2, 3, 0] if u == 15 else range(4)
            for ia in order:
                c = "0" if u == 0 else vr(ACC + 16*ia, 16)
                mf.append(f"v_mfma_f32_32x32x16_bf16 {vr(ACC + 16*ia, 16)}, {ar(aV + 16*(u % 2) + 4*ia, 4)}, {vr(vP + 4*(u % 2), 4)}, {c}")
            fill = []
            if u + 1 < 16: fill += self.p_ops(u+1)
            fill += pend[:per]; pend = pend[per:]
            self.interleave(mf, fill)
        assert not pend
        self.stamp()

    def combine(self, fused):
        E = self.E; I = E.I
        I(f"v_mov_b32 v{vT}, v{vL}\nv_permlane32_swap_b32 v{vL}, v{vT}\nv_add_f32 v{vL}, v{vL}, v{vT}")
        I(f"v_mov_b32 v6, v{vM}\nv_mov_b32 v7, v{vL}")
        I(f"ds_write_b64 v{vA}, v[6:7] offset:14336")
        for ia in range(1, 4):
            for rq in range(4):
                I(f"ds_write_b128 v{vA}, {vr(ACC + 16*ia + 4*rq, 4)} offset:{(ia-1)*4096 + rq*1024}")
        E.barrier()
        ST = 176
        for ia in range(1, 4): I(f"ds_read_b64 {vr(ST + 2*ia, 2)}, v{vA+ia} offset:14336")
        for ia in range(1, 4):
            for rq in range(4):
                I(f"ds_read_b128 {vr(S0 + 16*(ia-1) + 4*rq, 4)}, v{vA+ia} offset:{(ia-1)*4096 + rq*1024}")
        I(f"v_max3_f32 v{vT}, v{vM}, v{ST+2}, v{ST+4}\nv_max_f32 v{vT}, v{vT}, v{ST+6}")
        I(f"v_sub_f32 v{ST}, v{vM}, v{vT}")
        for ia in range(1, 4): I(f"v_sub_f32 v{ST+2*ia}, v{ST+2*ia}, v{vT}")
        for ia in range(4): I(f"v_exp_f32 v{ST+2*ia}, v{ST+2*ia}")
        I(f"v_mul_f32 v{vL}, v{ST}, v{vL}")
        for ia in range(1, 4): I(f"v_fmac_f32 v{vL}, v{ST+2*ia}, v{ST+2*ia+1}")
        I(f"v_rcp_f32 v{vL}, v{vL}")
        for ia in range(4): I(f"v_mul_f32 v{ST+2*ia}, v{ST+2*ia}, v{vL}")
        for r in range(16): I(f"v_mul_f32 v{ACC+r}, v{ST}, v{ACC+r}")
        for ia in range(1, 4):
            for r in range(16): I(f"v_fmac_f32 v{ACC+r}, v{ST+2*ia}, v{S0 + 16*(ia-1) + r}")
        for d in range(8): I(f"v_cvt_pk_bf16_f32 v{vP+d}, v{ACC+2*d}, v{ACC+2*d+1}")
        I(f"s_lshl_b32 s{sT}, s{sB}, 2\ns_add_u32 s{sT}, s{sT}, s{sG}\ns_lshl_b32 s{sT}, s{sT}, 3\ns_add_u32 s{sT}, s{sT}, s{sHL}\ns_lshl_b32 s{sT}, s{sT}, 2\ns_add_u32 s{sT}, s{sT}, s{sW}\ns_lshl_b32 s{sT}, s{sT}, 11")
        I("v_lshlrev_b32 v5, 4, v0")
        sc = " sc1" if fused else ""
        for s in range(2):
            I(f"buffer_store_dwordx4 {vr(vP + 4*s, 4)}, v5, {srd(WS)}, s{sT} offen offset:{s*1024}{sc}")
        self.stamp()

    def wo_tile(self, st, t):
        self.emit_reads(self.tr_reads(st.slot[("wo", t)], vRV, 16*t, 2048))

    def oproj(self, fused):
        E = self.E; I = E.I
        I("v_lshlrev_b32 v5, 4, v0")
        sc = " sc1" if fused else ""
        for t in range(16):
            I(f"s_xor_b32 s{sT}, s{sOF}, {t << 10}")
            I(f"buffer_load_dwordx4 {vr(S0 + 4*t, 4)}, v5, {srd(WS)}, s{sT} offen{sc}")
        I(f"v_and_b32 v6, 31, v0\nv_lshrrev_b32 v7, 5, v0\nv_and_b32 v{vT}, 7, v0\nv_xor_b32 v7, v7, v{vT}\nv_lshlrev_b32 v7, 4, v7")
        I(f"s_lshl_b32 s{sT}, s{sW}, 7\nv_or_b32 v7, s{sT}, v7\nv_lshl_add_u32 v6, v6, 9, v7\nv_add_u32 v8, s{sWB}, v6")
        for k in range(1, 16): I(f"v_xor_b32 v{8+k}, {((k >> 2) << 7) | ((k & 3) << 5)}, v8")
        I(f"v_lshrrev_b32 v6, 4, v0\nv_and_b32 v7, 15, v0\nv_lshlrev_b32 v7, 1, v7\nv_xor_b32 v7, v7, v6\nv_lshlrev_b32 v7, 4, v7")
        I(f"s_lshl_b32 s{sT}, s{sW}, 12\nv_lshl_add_u32 v6, v6, 9, v7\nv_add_u32 v24, s{sT}, v6")
        for e in range(1, 4): I(f"v_xor_b32 v{24+e}, {((e & 1) | ((e >> 1) << 2)) << 4}, v24")
        for e in range(4): I(f"v_add_u32 v{28+e}, {2*WAVE_LDS}, v{24+e}")
        for t in range(16):
            for ia in range(4):
                c = "0" if t == 0 else vr(ACC + 16*ia, 16)
                I(f"v_mfma_f32_32x32x16_bf16 {vr(ACC + 16*ia, 16)}, {ar(16*t + 4*ia, 4)}, {vr(S0 + 4*t, 4)}, {c}")
        self.stamp()
        for ia in range(4):
            for a in range(4):
                I(f"ds_write_b128 v{8 + 4*ia + a}, {vr(ACC + 16*ia + 4*a, 4)}", ldsw=(0, 16384))
        E.barrier()
        for e in range(4):
            for sw in range(4):
                I(f"ds_read_b128 {vr(192 + 16*sw + 4*e, 4)}, v{24 + e + 4*(sw >> 1)} offset:{(sw & 1)*WAVE_LDS + (e >> 1)*2048}")
        for e in range(4):
            for sw in range(1, 4):
                for c in range(4): I(f"v_add_f32 v{192+4*e+c}, v{192+4*e+c}, v{192+16*sw+4*e+c}")
        I(f"s_lshl_b32 s{sT2}, s{sB}, 3\ns_add_u32 s{sT2}, s{sT2}, s{sHL}\ns_lshl_b32 s{sT2}, s{sT2}, 2")
        I(f"s_add_u32 s{sT}, s{sT2}, s{sW}\ns_lshl_b32 s{sT}, s{sT}, 2\ns_add_u32 s{sT}, s{sT}, s{sG}\ns_lshl_b32 s{sT}, s{sT}, 12\ns_add_u32 s{sT}, s{sT}, {WS_P}")
        if not fused:
            for e in range(4):
                I(f"buffer_store_dwordx4 {vr(192 + 4*e, 4)}, v5, {srd(WS)}, s{sT} offen offset:{e*1024}")

    def out_store(self, src):
        E = self.E; I = E.I
        for d in range(8): I(f"v_cvt_pk_bf16_f32 v{vP+d}, v{src+2*d}, v{src+2*d+1}")
        I(f"v_lshrrev_b32 v6, 4, v0\nv_and_b32 v7, 15, v0\nv_lshlrev_b32 v7, 4, v7\nv_lshl_add_u32 v6, v6, 11, v7")
        I(f"s_lshl_b32 s{sT}, s{sB}, 16\ns_lshl_b32 s{sT2}, s{sT3}, 14\ns_add_u32 s{sT}, s{sT}, s{sT2}\ns_lshl_b32 s{sT2}, s{sHL}, 8\ns_add_u32 s{sT}, s{sT}, s{sT2}")
        I(f"v_add_u32 v7, 8192, v6")
        I(f"buffer_store_dwordx4 {vr(vP, 4)}, v6, {srd(OUT)}, s{sT} offen")
        I(f"buffer_store_dwordx4 {vr(vP+4, 4)}, v7, {srd(OUT)}, s{sT} offen")

def f32hex(x):
    import struct
    return "0x%08x" % struct.unpack("<I", struct.pack("<f", x))[0]

def kopen(name): return f".globl {name}\n.p2align 8\n.type {name},@function\n{name}:\n"
def kdesc(name, vgpr, accum, sgpr=102):
    return f""".section .rodata,"a"
.p2align 6
.amdhsa_kernel {name}
  .amdhsa_next_free_vgpr {vgpr}
  .amdhsa_next_free_sgpr {sgpr}
  .amdhsa_accum_offset {accum}
  .amdhsa_group_segment_fixed_size 0
  .amdhsa_kernarg_size 64
  .amdhsa_user_sgpr_count 2
  .amdhsa_user_sgpr_kernarg_segment_ptr 1
  .amdhsa_system_sgpr_workgroup_id_x 1
  .amdhsa_float_denorm_mode_32 3
.end_amdhsa_kernel
"""

LAYOUT = """; Kernarg layout (64 bytes): x, k_cache, v_cache, wq, wo, out, debug, ws (8-byte pointers)
"""

def kernel_front(cfg):
    g = Gen(cfg); E = g.E
    g.prologue(["x", "wq", "k", "v", "ws"], "A")
    st = Stream(E); g.add_x(st); g.add_wq(st); g.add_k(st); g.add_v(st)
    g.dma_addr_x(); g.dma_addr_16(); g.dma_addr_wq(); g.dma_addr_kv()
    E.wait_lg0()
    st.service()
    g.phase_q(st); g.phase_s(st); g.phase_pv(st); g.combine(False)
    g.write_stamps(0)
    E.I("s_endpgm")
    return g
def kernel_oproj(cfg):
    g = Gen(cfg); E = g.E
    g.prologue(["wo", "ws"], "B")
    st = Stream(E); g.add_wo(st)
    g.dma_addr_16(); g.dma_addr_wo()
    E.wait_lg0()
    st.service()
    g.read_addr_tr("v")
    for t in range(16):
        g.wo_tile(st, t)
        if t >= 1: st.free(4); st.service()
    g.stamp()
    g.oproj(False)
    g.write_stamps(1)
    E.I("s_endpgm")
    return g
def kernel_final(cfg):
    g = Gen(cfg); E = g.E; I = E.I
    g.prologue(["out", "ws"], "C")
    I(f"s_lshl_b32 s{sT2}, s{sB}, 3\ns_add_u32 s{sT2}, s{sT2}, s{sHL}\ns_lshl_b32 s{sT2}, s{sT2}, 2\ns_add_u32 s{sT2}, s{sT2}, s{sG}\ns_lshl_b32 s{sT2}, s{sT2}, 14\ns_add_u32 s{sT2}, s{sT2}, {WS_P}")
    I("v_lshlrev_b32 v5, 4, v0")
    E.wait_lg0()
    for sw in range(4):
        I(f"s_add_u32 s{sT}, s{sT2}, {sw*4096}")
        for e in range(4): I(f"buffer_load_dwordx4 {vr(64 + 16*sw + 4*e, 4)}, v5, {srd(WS)}, s{sT} offen offset:{e*1024}")
    for sw in range(1, 4):
        for r in range(16): I(f"v_add_f32 v{64+r}, v{64+r}, v{64+16*sw+r}")
    I(f"s_mov_b32 s{sT3}, s{sG}")
    g.out_store(64)
    g.write_stamps(2)
    I("s_endpgm")
    return g

def build_multi(cfg):
    a, b, c = kernel_front(cfg), kernel_oproj(cfg), kernel_final(cfg)
    names = ["front_kernel", "oproj_kernel", "final_kernel"]
    hdr = LAYOUT
    hdr += f"; @launch kernel=front_kernel grid=(256,1,1) block=(256,1,1) lds=163840\n"
    hdr += f"; @launch kernel=oproj_kernel grid=(256,1,1) block=(256,1,1) lds=163840\n"
    hdr += f"; @launch kernel=final_kernel grid=(256,1,1) block=(64,1,1) lds=0\n"
    s = hdr + '.amdgcn_target "amdgcn-amd-amdhsa--gfx950"\n.text\n'
    for n, g in zip(names, (a, b, c)):
        s += kopen(n) + g.E.text() + "\n"
        print(n, g.E.stats(), "nops", g.E.nnop, file=sys.stderr)
    s += kdesc(names[0], 512, 256) + kdesc(names[1], 512, 256) + kdesc(names[2], 128, 128)
    return s

if __name__ == "__main__":
    cfg = eval(sys.argv[2]) if len(sys.argv) > 2 else {}
    mode = cfg.get("mode", "multi")
    s = build_multi(cfg)
    open(sys.argv[1], "w").write(s)
```

```python
import sys, math, struct
from asmlib import Asm

KNAME = "standalone__gqa_block_cached__near_ridge_kernel"
R = 32
WAVE_LDS = 40960
SCR = 24576
WS_O, WS_P, WS_F1, WS_F2, WS_E, WS_STAMP = 0, 2 << 20, 6 << 20, (6 << 20) + 65536, (6 << 20) + 131072, 8 << 20
X, K, V, WQ, WO, OUT, WS = 20, 24, 28, 32, 36, 40, 44
sW, sI, sJ, sG, sJB, sB, sHL, sH, sWB = 50, 51, 52, 53, 54, 55, 56, 57, 58
sXB, sQB, sKV, sOB, sOF, sT, sT2, sF, sE, sT3, sC = 59, 60, 61, 62, 63, 64, 65, 66, 67, 68, 69
sD, sRQ, sRO, sCNT, sBG = 12, 13, 14, 15, 16
vA = 1
vDQ, vDK, vDV, vDO, vRK, vRQ, vRV = 8, 12, 16, 17, 21, 29, 33
vM, vL, vT = 37, 38, 39
vP, vMC, vLT = 40, 48, 56
ACC, S0 = 64, 128
QOWN = 80
aX, aWQ, aQ, aK, aV = 0, 64, 96, 128, 192
LCG_A, LCG_C = 0x9E3779B1, 0x7F4A7C15

def srd(r): return f"s[{r}:{r+3}]"
def vr(a, n): return f"v[{a}:{a+n-1}]"
def ar(a, n): return f"a[{a}:{a+n-1}]"
def f32hex(x): return "0x%08x" % struct.unpack("<I", struct.pack("<f", x))[0]

class Stream:
    def __init__(self, E):
        self.E = E; self.groups = []; self.pos = 0; self.head = 0; self.freed = 0; self.slot = {}
    def add(self, name, n, fn): self.groups.append((name, n, fn))
    def take(self, maxg=99):
        cnt = 0; ops = []
        while self.pos < len(self.groups) and cnt < maxg:
            name, n, fn = self.groups[self.pos]
            if self.head + n > self.freed + R: break
            s = self.head % R
            assert s + n <= R
            self.slot[name] = s
            ops += fn(s); self.head += n; self.pos += 1; cnt += 1
        return ops
    def service(self, maxg=99):
        for f in self.take(maxg): f()
    def free(self, n): self.freed += n

class Gen:
    def __init__(self, cfg):
        self.cfg = cfg; self.E = Asm(); self.nst = 0; self.names = []
    def aux(self, what): return self.cfg.get("aux_" + what, self.cfg.get("aux", ""))
    def stamp(self, name=""):
        if self.cfg.get("stamps"):
            r = 70 + 2 * self.nst; assert r <= 100
            self.E.I(f"s_memrealtime s[{r}:{r+1}]"); self.nst += 1; self.names.append(name)
    def write_stamps(self):
        if not self.cfg.get("stamps"): return
        E = self.E
        self.stamp("end")
        E.wait_all()
        E.I(f"s_lshl_b32 s{sT}, s2, 2\ns_add_u32 s{sT}, s{sT}, s{sW}\ns_lshl_b32 s{sT}, s{sT}, 6\ns_add_u32 s{sT}, s{sT}, {WS_STAMP}")
        E.I("v_mov_b32 v5, 0")
        for i in range(self.nst):
            E.I(f"v_mov_b32 v6, s{70+2*i}")
            E.I(f"buffer_store_dword v6, v5, {srd(WS)}, s{sT} offen offset:{4*i}")
        E.wait_all()
    def run(self, f):
        if callable(f): f()
        elif isinstance(f, tuple): self.E.I(f[0], ldsr=f[1])
        else: self.E.I(f)
    def runall(self, l):
        for f in l: self.run(f)

    def prologue(self):
        E = self.E; I = E.I; cfg = self.cfg
        I("s_cmp_lt_u32 s2, 256\ns_cbranch_scc1 L_go\ns_endpgm\nL_go:")
        self.stamp("start")
        if cfg.get("delay"):
            I(f"s_mov_b32 s10, {cfg['delay']}\nL_dly:\ns_sub_u32 s10, s10, 1\ns_cmp_lg_u32 s10, 0\ns_cbranch_scc1 L_dly")
        ptr = [(WQ, 24, 8388608), (X, 0, 524288), (WS, 56, 268435456), (K, 8, 8388608), (V, 16, 8388608), (WO, 32, 8388608), (OUT, 40, 524288)]
        for r, off, size in ptr: I(f"s_load_dwordx2 s[{r}:{r+1}], s[0:1], {off}")
        I("v_lshrrev_b32 v5, 6, v0\nv_and_b32 v0, 63, v0")
        I(f"v_readfirstlane_b32 s{sW}, v5")
        for r, off, size in ptr: I(f"s_mov_b32 s{r+2}, {size}\ns_mov_b32 s{r+3}, 0x20000")
        I(f"s_and_b32 s{sI}, s2, 7\ns_lshr_b32 s{sJ}, s2, 3\ns_and_b32 s{sG}, s{sI}, 3\ns_lshr_b32 s{sJB}, s{sJ}, 3")
        I(f"s_and_b32 s{sB}, s{sI}, 4\ns_add_u32 s{sB}, s{sB}, s{sJB}\ns_and_b32 s{sHL}, s{sJ}, 7")
        I(f"s_lshl_b32 s{sH}, s{sG}, 3\ns_add_u32 s{sH}, s{sH}, s{sHL}\ns_mul_i32 s{sWB}, s{sW}, {WAVE_LDS}")
        lq = cfg.get("rot_q", 0); lo = cfg.get("rot_o", 0); lk = cfg.get("rot_kv", 1)
        I(f"s_and_b32 s{sRQ}, s{sJB}, {(1 << lq) - 1}\ns_lshl_b32 s{sRQ}, s{sRQ}, {4 - lq}")
        I(f"s_lshl_b32 s{sQB}, s{sW}, 21\ns_lshl_b32 s{sT}, s{sRQ}, 17\ns_or_b32 s{sQB}, s{sQB}, s{sT}\ns_lshl_b32 s{sT}, s{sH}, 8\ns_or_b32 s{sQB}, s{sQB}, s{sT}")
        I(f"s_lshl_b32 s{sXB}, s{sB}, 16\ns_lshl_b32 s{sT}, s{sW}, 9\ns_or_b32 s{sXB}, s{sXB}, s{sT}")
        self.dma_addr_16(); self.dma_addr_wq(); self.dma_addr_x()
        self.late = late = []
        A = late.append
        A(f"s_and_b32 s{sRO}, s{sJB}, {(1 << lo) - 1}"); A(f"s_lshl_b32 s{sRO}, s{sRO}, {4 - lo}")
        A(f"s_lshl_b32 s{sBG}, s{sB}, 2"); A(f"s_add_u32 s{sBG}, s{sBG}, s{sG}")
        for x in (f"s_lshl_b32 s{sKV}, s{sBG}, 18", f"s_lshl_b32 s{sT}, s{sW}, 16", f"s_or_b32 s{sKV}, s{sKV}, s{sT}",
                  f"s_and_b32 s{sT}, s{sHL}, {(1 << lk) - 1}", f"s_lshl_b32 s{sT}, s{sT}, {16 - lk}", f"s_or_b32 s{sKV}, s{sKV}, s{sT}",
                  f"s_lshl_b32 s{sOF}, s{sBG}, 16", f"s_lshl_b32 s{sT}, s{sW}, 14", f"s_or_b32 s{sOF}, s{sOF}, s{sT}", f"s_lshl_b32 s{sT}, s{sRO}, 10", f"s_or_b32 s{sOF}, s{sOF}, s{sT}",
                  f"s_lshl_b32 s{sOB}, s{sG}, 21", f"s_lshl_b32 s{sT}, s{sW}, 19", f"s_or_b32 s{sOB}, s{sOB}, s{sT}", f"s_lshl_b32 s{sT}, s{sRO}, 15", f"s_or_b32 s{sOB}, s{sOB}, s{sT}",
                  f"s_lshl_b32 s{sT}, s{sHL}, 8", f"s_or_b32 s{sOB}, s{sOB}, s{sT}",
                  f"s_mov_b32 s{sC}, {f32hex(128 ** -0.5 * math.log2(math.e))}"): A(x)

    def dma_addr_x(self):
        I = self.E.I
        I(f"v_lshrrev_b32 v144, 5, v0\nv_and_b32 v145, 31, v0\nv_xor_b32 v145, v144, v145\ns_lshl_b32 s{sT}, s{sRQ}, 1\nv_xor_b32 v145, s{sT}, v145")
        I(f"v_lshlrev_b32 v145, 4, v145\nv_lshl_add_u32 v128, v144, 11, v145")
        for i in range(1, 8): I(f"v_xor_b32 v{128+i}, {i << 5}, v128")
    def dma_addr_16(self):
        self.E.I("v_lshrrev_b32 v5, 4, v0\nv_and_b32 v6, 15, v0\nv_lshlrev_b32 v7, 2, v5\nv_xor_b32 v7, v7, v6\nv_lshlrev_b32 v7, 4, v7")
    def dma_addr_wq(self):
        I = self.E.I
        I(f"v_lshl_add_u32 v{vDQ}, v5, 13, v7")
        for ii in range(1, 4): I(f"v_add_u32 v{vDQ+ii}, {ii*(32768-1024)}, v{vDQ}")
    def addr_rest(self):
        L = []
        def I(t): L.extend(x for x in t.split("\n") if x.strip())
        I(f"v_lshl_add_u32 v{vDO}, v5, 11, v7")
        for ii in range(1, 4): I(f"v_add_u32 v{vDO+ii}, {ii*(8192-1024)}, v{vDO}")
        I(f"v_lshl_add_u32 v{vDV}, v5, 8, v7")
        I(f"v_xor_b32 v{vDK}, v5, v6\nv_lshlrev_b32 v{vDK}, 4, v{vDK}\nv_lshl_add_u32 v{vDK}, v5, 8, v{vDK}")
        for ii in range(1, 4): I(f"v_xor_b32 v{vDK+ii}, {ii << 6}, v{vDK}")
        I("v_and_b32 v5, 31, v0\nv_lshrrev_b32 v6, 5, v0\nv_and_b32 v7, 15, v0\nv_xor_b32 v6, v6, v7\nv_lshlrev_b32 v6, 4, v6")
        I(f"v_lshl_add_u32 v7, v5, 9, v6\nv_add_u32 v7, {SCR}, v7\nv_add_u32 v136, s{sWB}, v7")
        for s in range(1, 8): I(f"v_xor_b32 v{136+s}, {s << 5}, v136")
        I(f"s_lshl_b32 s{sT}, s{sW}, 6\nv_xor_b32 v6, s{sT}, v6\nv_lshl_add_u32 v6, v5, 8, v6\nv_add_u32 v{vRK}, s{sWB}, v6")
        for s in range(1, 8): I(f"v_xor_b32 v{vRK+s}, {s << 5}, v{vRK}")
        for which in "qv":
            I("v_bfe_u32 v5, v0, 2, 2\nv_lshrrev_b32 v6, 5, v0")
            if which == "q":
                base = vRQ
                I("v_lshl_add_u32 v6, v6, 3, v5\nv_and_b32 v7, 1, v0\nv_lshlrev_b32 v7, 4, v7\nv_bfe_u32 v39, v0, 1, 1\nv_lshl_add_u32 v7, v39, 3, v7")
            else:
                base = vRV
                I("v_lshl_add_u32 v6, v6, 2, v5\nv_and_b32 v7, 3, v0\nv_lshlrev_b32 v7, 3, v7")
            I("v_bfe_u32 v39, v0, 4, 1\nv_lshl_add_u32 v7, v39, 5, v7")
            I(f"v_lshl_add_u32 v7, v6, 8, v7\nv_add_u32 v7, s{sWB}, v7")
            I(f"v_xor_b32 v5, s{sW}, v5\nv_lshl_add_u32 v{base}, v5, 6, v7")
            for ia in range(1, 4): I(f"v_xor_b32 v{base+ia}, {ia << 6}, v{base}")
        I(f"v_lshlrev_b32 v5, 4, v0\nv_add_u32 v6, {SCR}, v5\nv_add_u32 v{vA}, s{sWB}, v6")
        for ia in range(1, 4):
            I(f"s_xor_b32 s{sT}, s{sW}, {ia}\ns_mul_i32 s{sT}, s{sT}, {WAVE_LDS}\nv_add_u32 v{vA+ia}, s{sT}, v6")
        return L

    def x_ops(self):
        I = self.E.I
        def mk(i):
            def f():
                o = SCR + i*1024
                I(f"s_add_u32 m0, s{sWB}, {o}\ns_add_u32 s{sD}, s{sXB}, {i*4096}")
                I(f"buffer_load_dwordx4 v{128 + i % 8}, {srd(X)}, s{sD} offen {self.aux('x')} lds", ldsw=(o, o+1024))
            return f
        return [mk(i) for i in range(16)]
    def group4(self, srdr, base, xorv, vregs, aux):
        I = self.E.I
        def fn(slot):
            def mk(ii):
                def f():
                    if ii == 0: I(f"s_add_u32 m0, s{sWB}, {slot*1024}\ns_xor_b32 s{sD}, s{base}, {xorv}")
                    o = f" offset:{ii*1024}" if ii else ""
                    I(f"buffer_load_dwordx4 v{vregs[ii]}, {srd(srdr)}, s{sD} offen{o} {aux} lds", ldsw=((slot+ii)*1024, (slot+ii+1)*1024))
                return f
            return [mk(ii) for ii in range(4)]
        return fn
    def add_streams(self, st):
        for t in range(16): st.add(("wq", t), 4, self.group4(WQ, sQB, t << 17, [vDQ+i for i in range(4)], self.aux("wq")))
        for t in range(8):
            for hh in range(2): st.add(("k", t, hh), 4, self.group4(K, sKV, (t << 13) | (hh << 12), [vDK+i for i in range(4)], self.aux("k")))
        for u in range(16): st.add(("v", u), 4, self.group4(V, sKV, u << 12, [vDV]*4, self.aux("v")))
        for t in range(16): st.add(("wo", t), 4, self.group4(WO, sOB, t << 15, [vDO+i for i in range(4)], self.aux("wo")))

    def tr_reads(self, slot, addr, dst, jjstep):
        return [(f"ds_read_b64_tr_b16 {ar(dst + 4*ia + 2*jj, 2)}, v{addr+ia} offset:{slot*1024 + jj*jjstep}", (slot*1024, slot*1024+4096))
                for ia in range(4) for jj in range(2)]
    def k_reads(self, st, t):
        slot = st.slot[("k", t, 0)]
        assert st.slot[("k", t, 1)] == slot + 4
        return [(f"ds_read_b128 {ar(aK + 32*(t % 2) + 4*s, 4)}, v{vRK+s} offset:{slot*1024}", (slot*1024, slot*1024 + 8192)) for s in range(8)]
    def qfrag(self, s):
        return vr(QOWN + 4*s, 4) if s < 2 else ar(aQ + 4*(s-2), 4)

    def step(self, mf, dma, reads, valu, rd_first=1, rd_gaps=2):
        n = len(mf)
        for i, m in enumerate(mf):
            self.run(m)
            lo, hi = (len(dma) * i) // n, (len(dma) * (i + 1)) // n
            self.runall(dma[lo:hi])
            g = i - rd_first
            if 0 <= g < rd_gaps:
                self.runall(reads[(len(reads) * g) // rd_gaps:(len(reads) * (g + 1)) // rd_gaps])
            self.runall(valu[(len(valu) * i) // n:(len(valu) * (i + 1)) // n])

    def start(self, st):
        E = self.E; I = E.I; cfg = self.cfg
        st.freed = -8
        E.wait_lg0()
        I(f"s_lshl_b32 s{sT}, s{sB}, 8\ns_add_u32 s{sT}, s{sT}, {WS_E}\ns_add_u32 s4, s{WS}, s{sT}\ns_addc_u32 s5, s{WS+1}, 0\ns_load_dword s{sE}, s[4:5], 0")
        first = st.take(1)
        ops = first + self.x_ops() + st.take()
        side = self.late + self.addr_rest()
        if cfg.get("pf_code", 1):
            pf = [f"s_getpc_b64 s[6:7]", "L_pc:", f"s_lshl_b32 s{sT}, s{sJ}, 10", f"v_and_b32 v146, 7, v0", f"v_lshlrev_b32 v146, 7, v146",
                  f"v_add_u32 v146, s{sT}, v146", f"v_min_u32 v146, L_end-L_pc-4, v146", f"global_load_dword v147, v146, s[6:7]"]
            self.runall(ops[:4]); ops = ops[4:]
            self.runall(pf)
        n = len(ops)
        for i, f in enumerate(ops):
            f(); self.runall(side[(len(side) * i) // n:(len(side) * (i + 1)) // n])
        self.stamp("issued")
    def phase_q(self, st):
        E = self.E; I = E.I
        E.wait_lg0()
        I(f"s_mul_i32 s{sF}, s{sE}, {LCG_A}\ns_add_u32 s{sF}, s{sF}, {LCG_C}")
        for s in range(16):
            I(f"ds_read_b128 {ar(aX + 4*s, 4)}, v{136 + s % 8} offset:{(s // 8) * 256}", ldsr=(SCR, SCR + 16384))
        self.runall(self.tr_reads(st.slot[("wq", 0)], vRQ, aWQ, 1024))
        st.free(8); st.service()
        self.stamp("x")
        for t in range(16):
            if t < 14: st.free(4)
            dma = st.take()
            reads = self.tr_reads(st.slot[("wq", t+1)], vRQ, aWQ + 16*((t+1) % 2), 1024) if t + 1 < 16 else self.k_reads(st, 0)
            mf = []
            for ia in ([1, 2, 3, 0] if t == 15 else range(4)):
                c = "0" if t == 0 else vr(ACC + 16*ia, 16)
                mf.append(f"v_mfma_f32_32x32x16_bf16 {vr(ACC + 16*ia, 16)}, {ar(aWQ + 16*(t % 2) + 4*ia, 4)}, {ar(aX + 4*t, 4)}, {c}")
            self.step(mf, dma, reads, [])
        self.stamp("Q")
        for ia in range(1, 4):
            for rq in range(4):
                o = (ia-1)*4096 + rq*1024
                I(f"ds_write_b128 v{vA}, {vr(ACC + 16*ia + 4*rq, 4)} offset:{o}", ldsw=(SCR+o, SCR+o+1024))
        E.barrier()
        for ia in range(1, 4):
            for rq in range(4):
                I(f"ds_read_b128 {vr(S0 + 16*(ia-1) + 4*rq, 4)}, v{vA+ia} offset:{(ia-1)*4096 + rq*1024}")
        for ia in range(1, 4):
            for r in range(16):
                I(f"v_add_f32 v{ACC+r}, v{ACC+r}, v{S0 + 16*(ia-1) + r}")
        for d in range(8):
            I(f"v_cvt_pk_bf16_f32 v{QOWN+d}, v{ACC+2*d}, v{ACC+2*d+1}")
        for s in range(2):
            I(f"ds_write_b128 v{vA}, {vr(QOWN + 4*s, 4)} offset:{12288 + s*1024}")
        E.barrier()
        for ia in range(1, 4):
            for s in range(2):
                I(f"ds_read_b128 {ar(aQ + 8*(ia-1) + 4*s, 4)}, v{vA+ia} offset:{12288 + s*1024}")
        st.free(8); st.service()
        self.stamp("Qred")

    def softmax_ops(self, t, mcreg=None):
        s = S0 + 16*t
        mx = [f"v_max3_f32 v{vMC+t}, v{s}, v{s+1}, v{s+2}"]
        for i in range(3, 15, 2): mx.append(f"v_max3_f32 v{vMC+t}, v{vMC+t}, v{s+i}, v{s+i+1}")
        mx.append(f"v_max_f32 v{vMC+t}, v{vMC+t}, v{s+15}")
        mx.append(f"v_mul_f32 v{vMC+t}, s{sC}, v{vMC+t}")
        mc = mcreg if mcreg is not None else vMC + t
        ex = []
        for h in range(2):
            b = s + 8*h
            ex += [f"v_fma_f32 v{b+i}, v{b+i}, s{sC}, -v{mc}" for i in range(8)]
            ex += [f"v_exp_f32 v{b+i}, v{b+i}" for i in range(8)]
        sm = [f"v_add_f32 v{vLT+t}, v{s}, v{s+1}", f"v_add_f32 v{vT}, v{s+2}, v{s+3}"]
        for i in range(4, 16, 2):
            sm += [f"v_add_f32 v{vLT+t}, v{vLT+t}, v{s+i}", f"v_add_f32 v{vT}, v{vT}, v{s+i+1}"]
        sm.append(f"v_add_f32 v{vLT+t}, v{vLT+t}, v{vT}")
        return mx, ex, sm

    def phase_s(self, st):
        E = self.E; I = E.I
        for t in range(8):
            st.free(8); dma = st.take()
            reads = self.k_reads(st, t+1) if t + 1 < 8 else self.tr_reads(st.slot[("v", 0)], vRV, aV, 2048)
            mf = []
            for s in range(8):
                c = "0" if s == 0 else vr(S0 + 16*t, 16)
                mf.append(f"v_mfma_f32_32x32x16_bf16 {vr(S0 + 16*t, 16)}, {ar(aK + 32*(t % 2) + 4*s, 4)}, {self.qfrag(s)}, {c}")
            valu = []
            if t >= 1:
                mx, ex, sm = self.softmax_ops(t-1)
                valu = ["s_nop 0"] * 0 + mx + ex + sm
                k = len(valu) // 7
                valu = [lambda: None] * (k + 1) + valu
            self.step(mf, dma, reads, valu, rd_first=1, rd_gaps=4)
        self.stamp("S")
        mx, ex, sm = self.softmax_ops(7, mcreg=vM)
        I(f"v_max3_f32 v{vM}, v{vMC}, v{vMC+1}, v{vMC+2}\nv_max3_f32 v{vM}, v{vM}, v{vMC+3}, v{vMC+4}\nv_max3_f32 v{vM}, v{vM}, v{vMC+5}, v{vMC+6}")
        for x in mx: I(x)
        I(f"v_max_f32 v{vM}, v{vM}, v{vMC+7}\nv_mov_b32 v{vT}, v{vM}")
        I(f"v_permlane32_swap_b32 v{vM}, v{vT}\nv_max_f32 v{vM}, v{vM}, v{vT}")
        for t in range(7): I(f"v_sub_f32 v{vMC+t}, v{vMC+t}, v{vM}")
        for t in range(7): I(f"v_exp_f32 v{vMC+t}, v{vMC+t}")
        self.pend = ex + sm
    def p_ops(self, u):
        t, ks = divmod(u, 2); s = S0 + 16*t + 8*ks; p = vP + 4*(u % 2)
        ops = []
        if t < 7: ops += [f"v_mul_f32 v{s+i}, v{vMC+t}, v{s+i}" for i in range(8)]
        ops += [f"v_cvt_pk_bf16_f32 v{p+d}, v{s+2*d}, v{s+2*d+1}" for d in range(4)]
        return ops
    def phase_pv(self, st):
        E = self.E; I = E.I
        self.runall(self.p_ops(0))
        pend = list(self.pend)
        pend += [f"v_mul_f32 v{vL}, v{vMC}, v{vLT}"] + [f"v_fmac_f32 v{vL}, v{vMC+t}, v{vLT+t}" for t in range(1, 7)] + [f"v_add_f32 v{vL}, v{vL}, v{vLT+7}"]
        pend += [f"v_mov_b32 v6, v{vL}", "s_nop 1", f"v_permlane32_swap_b32 v{vL}, v6", f"v_add_f32 v{vL}, v{vL}, v6", f"v_mov_b32 v6, v{vM}", f"v_mov_b32 v7, v{vL}",
                 f"ds_write_b64 v{vA}, v[6:7] offset:14336"]
        per = 8
        for u in range(16):
            if u < 14: st.free(4)
            dma = st.take()
            reads = self.tr_reads(st.slot[("v", u+1)], vRV, aV + 16*((u+1) % 2), 2048) if u + 1 < 16 else []
            mf = []
            for ia in ([1, 2, 3, 0] if u == 15 else range(4)):
                c = "0" if u == 0 else vr(ACC + 16*ia, 16)
                mf.append(f"v_mfma_f32_32x32x16_bf16 {vr(ACC + 16*ia, 16)}, {ar(aV + 16*(u % 2) + 4*ia, 4)}, {vr(vP + 4*(u % 2), 4)}, {c}")
            valu = []
            if u + 1 < 16: valu += self.p_ops(u+1)
            valu += pend[:per]; pend = pend[per:]
            self.step(mf, dma, reads, valu)
        assert not pend
        self.stamp("PV")

    def combine(self, st):
        E = self.E; I = E.I
        for ia in range(1, 4):
            for rq in range(4):
                o = (ia-1)*4096 + rq*1024
                I(f"ds_write_b128 v{vA}, {vr(ACC + 16*ia + 4*rq, 4)} offset:{o}", ldsw=(SCR+o, SCR+o+1024))
        E.barrier()
        ST = 176
        for ia in range(1, 4): I(f"ds_read_b64 {vr(ST + 2*ia, 2)}, v{vA+ia} offset:14336")
        for ia in range(1, 4):
            for rq in range(4):
                I(f"ds_read_b128 {vr(S0 + 16*(ia-1) + 4*rq, 4)}, v{vA+ia} offset:{(ia-1)*4096 + rq*1024}")
        I(f"s_lshl_b32 s{sT}, s{sBG}, 3\ns_add_u32 s{sT}, s{sT}, s{sHL}\ns_lshl_b32 s{sT}, s{sT}, 2\ns_add_u32 s{sT}, s{sT}, s{sW}\ns_lshl_b32 s{sT}, s{sT}, 11")
        I("v_lshlrev_b32 v5, 4, v0")
        I(f"v_max3_f32 v{vT}, v{vM}, v{ST+2}, v{ST+4}\nv_max_f32 v{vT}, v{vT}, v{ST+6}")
        I(f"v_sub_f32 v{ST}, v{vM}, v{vT}")
        for ia in range(1, 4): I(f"v_sub_f32 v{ST+2*ia}, v{ST+2*ia}, v{vT}")
        for ia in range(4): I(f"v_exp_f32 v{ST+2*ia}, v{ST+2*ia}")
        I(f"v_mul_f32 v{vL}, v{ST}, v{vL}")
        for ia in range(1, 4): I(f"v_fmac_f32 v{vL}, v{ST+2*ia}, v{ST+2*ia+1}")
        I(f"v_rcp_f32 v{vL}, v{vL}")
        for ia in range(4): I(f"v_mul_f32 v{ST+2*ia}, v{ST+2*ia}, v{vL}")
        for r in range(16): I(f"v_mul_f32 v{ACC+r}, v{ST}, v{ACC+r}")
        for ia in range(1, 4):
            for r in range(16): I(f"v_fmac_f32 v{ACC+r}, v{ST+2*ia}, v{S0 + 16*(ia-1) + r}")
        for d in range(8): I(f"v_cvt_pk_bf16_f32 v{vP+d}, v{ACC+2*d}, v{ACC+2*d+1}")
        for s in range(2):
            I(f"buffer_store_dwordx4 {vr(vP + 4*s, 4)}, v5, {srd(WS)}, s{sT} offen offset:{s*1024} sc1")
        self.stamp("Ost")
        E.barrier()
        st.free(8)

    def flag_store(self, off_sreg):
        I = self.E.I
        I(f"v_mov_b32 v6, s{sF}\nv_mov_b32 v7, 0")
        I(f"buffer_store_dword v6, v7, {srd(WS)}, s{off_sreg} offen sc1")
    def poll(self, label, vaddr, soff):
        E = self.E; I = E.I
        E.wait_vm(0)
        I(f"s_mov_b32 s{sCNT}, 0x200000\n{label}:")
        I(f"buffer_load_dword v6, v{vaddr}, {srd(WS)}, s{soff} offen sc1")
        E.wait_vm(0)
        I(f"v_cmp_ne_u32 vcc, s{sF}, v6\ns_cbranch_vccz {label}_ok")
        if self.cfg.get("poll_sleep", 0): I(f"s_sleep {self.cfg['poll_sleep']}")
        I(f"s_sub_u32 s{sCNT}, s{sCNT}, 1\ns_cmp_lg_u32 s{sCNT}, 0\ns_cbranch_scc1 {label}\n{label}_ok:")

    def wo_phase(self, st):
        E = self.E; I = E.I; cfg = self.cfg
        early = cfg.get("wo_early", 3)
        def tile(t):
            rd = self.tr_reads(st.slot[("wo", t)], vRV, 16*t, 2048)
            dma = st.take(1)
            for i in range(4):
                self.runall(rd[2*i:2*i+2]); self.runall(dma[i:i+1])
            st.free(4)
        for t in range(early): tile(t)
        E.wait_stores()
        I(f"s_lshr_b32 s{sT}, s{sHL}, 1\ns_lshl_b32 s{sT2}, s{sBG}, 2\ns_add_u32 s{sT}, s{sT}, s{sT2}\ns_lshl_b32 s{sT}, s{sT}, 7")
        I(f"s_and_b32 s{sT2}, s{sHL}, 1\ns_lshl_b32 s{sT2}, s{sT2}, 2\ns_add_u32 s{sT2}, s{sT2}, s{sW}\ns_lshl_b32 s{sT2}, s{sT2}, 2\ns_add_u32 s{sT}, s{sT}, s{sT2}\ns_add_u32 s{sT}, s{sT}, {WS_F1}")
        self.flag_store(sT)
        self.stamp("flag1")
        for t in range(early, 16): tile(t)
        self.stamp("wo")

    def oproj(self):
        E = self.E; I = E.I
        E.wait_lg(0)
        I(f"v_and_b32 v6, 31, v0\nv_lshrrev_b32 v7, 5, v0\nv_and_b32 v{vT}, 7, v0\nv_xor_b32 v7, v7, v{vT}\nv_lshlrev_b32 v7, 4, v7")
        I(f"s_lshl_b32 s{sT}, s{sW}, 7\nv_or_b32 v7, s{sT}, v7\nv_lshl_add_u32 v6, v6, 9, v7\nv_add_u32 v8, s{sWB}, v6")
        for k in range(1, 16): I(f"v_xor_b32 v{8+k}, {((k >> 2) << 7) | ((k & 3) << 5)}, v8")
        I(f"v_lshrrev_b32 v6, 4, v0\nv_and_b32 v7, 15, v0\nv_lshlrev_b32 v7, 1, v7\nv_xor_b32 v7, v7, v6\nv_lshlrev_b32 v7, 4, v7")
        I(f"s_lshl_b32 s{sT}, s{sW}, 12\nv_lshl_add_u32 v6, v6, 9, v7\nv_add_u32 v24, s{sT}, v6")
        for e in range(1, 4): I(f"v_xor_b32 v{24+e}, {((e & 1) | ((e >> 1) << 2)) << 4}, v24")
        for e in range(4): I(f"v_add_u32 v{28+e}, {2*WAVE_LDS}, v{24+e}")
        I(f"s_lshl_b32 s{sT}, s{sBG}, 2\ns_add_u32 s{sT}, s{sT}, s{sW}\ns_lshl_b32 s{sT}, s{sT}, 7\ns_add_u32 s{sT}, s{sT}, {WS_F1}")
        I("v_and_b32 v7, 7, v0\nv_lshlrev_b32 v7, 2, v7")
        self.poll("L_p1", 7, sT)
        self.stamp("poll1")
        for t in range(16):
            I(f"s_xor_b32 s{sT}, s{sOF}, {t << 10}")
            I(f"buffer_load_dwordx4 {vr(S0 + 4*t, 4)}, v5, {srd(WS)}, s{sT} offen sc1")
        for t in range(16):
            for ia in range(4):
                c = "0" if t == 0 else vr(ACC + 16*ia, 16)
                I(f"v_mfma_f32_32x32x16_bf16 {vr(ACC + 16*ia, 16)}, {ar(16*t + 4*ia, 4)}, {vr(S0 + 4*t, 4)}, {c}")
        self.stamp("oproj")
        for ia in range(4):
            for a in range(4):
                I(f"ds_write_b128 v{8 + 4*ia + a}, {vr(ACC + 16*ia + 4*a, 4)}", ldsw=(0, 16384))
        E.barrier()
        for e in range(4):
            for sw in range(4):
                I(f"ds_read_b128 {vr(192 + 16*sw + 4*e, 4)}, v{24 + e + 4*(sw >> 1)} offset:{(sw & 1)*WAVE_LDS + (e >> 1)*2048}")
        I(f"s_lshl_b32 s{sT2}, s{sB}, 3\ns_add_u32 s{sT2}, s{sT2}, s{sHL}\ns_lshl_b32 s{sT2}, s{sT2}, 2\ns_add_u32 s{sT2}, s{sT2}, s{sW}")
        I(f"s_lshl_b32 s{sT}, s{sT2}, 2\ns_add_u32 s{sT}, s{sT}, s{sG}\ns_lshl_b32 s{sT}, s{sT}, 12\ns_add_u32 s{sT}, s{sT}, {WS_P}")
        for e in range(4):
            for sw in range(1, 4):
                for c in range(4): I(f"v_add_f32 v{192+4*e+c}, v{192+4*e+c}, v{192+16*sw+4*e+c}")
        self.stamp("red")
        I(f"s_cmp_eq_u32 s{sW}, s{sG}\ns_cbranch_scc1 L_final")
        for e in range(4):
            I(f"buffer_store_dwordx4 {vr(192 + 4*e, 4)}, v5, {srd(WS)}, s{sT} offen offset:{e*1024} sc1")
        I(f"s_lshl_b32 s{sT}, s{sT2}, 7\ns_lshl_b32 s{sT3}, s{sG}, 2\ns_add_u32 s{sT}, s{sT}, s{sT3}\ns_add_u32 s{sT}, s{sT}, {WS_F2}")
        E.wait_vm(0)
        self.flag_store(sT)
        nst = self.nst
        self.stamp("flag2"); self.stamp("-")
        self.write_stamps()
        I("s_endpgm")
        self.nst = nst; self.names = self.names[:nst]
        I("L_final:")
        I(f"s_lshl_b32 s{sT}, s{sT2}, 7\ns_add_u32 s{sT}, s{sT}, {WS_F2}")
        I(f"v_and_b32 v7, 3, v0\nv_max_u32 v7, 1, v7\nv_xor_b32 v7, s{sG}, v7\nv_lshlrev_b32 v7, 2, v7")
        I(f"v_lshrrev_b32 v8, 4, v0\nv_and_b32 v9, 15, v0\nv_lshlrev_b32 v9, 4, v9\nv_lshl_add_u32 v8, v8, 11, v9\nv_add_u32 v9, 8192, v8")
        self.poll("L_p2", 7, sT)
        self.stamp("poll2")
        I(f"s_lshl_b32 s{sT2}, s{sT2}, 14\ns_add_u32 s{sT2}, s{sT2}, {WS_P}")
        for k in range(1, 4):
            I(f"s_xor_b32 s{sT}, s{sG}, {k}\ns_lshl_b32 s{sT}, s{sT}, 12\ns_add_u32 s{sT}, s{sT}, s{sT2}")
            for e in range(4): I(f"buffer_load_dwordx4 {vr(S0 + 16*(k-1) + 4*e, 4)}, v5, {srd(WS)}, s{sT} offen offset:{e*1024} sc1")
        I(f"s_or_b32 s{sT3}, s{sG}, s{sHL}\ns_cmp_lg_u32 s{sT3}, 0\ns_cbranch_scc1 L_noepoch")
        I(f"s_lshl_b32 s{sT3}, s{sB}, 8\ns_add_u32 s{sT3}, s{sT3}, {WS_E}")
        E.auto = False
        self.flag_store(sT3)
        E.vm.pop()
        E.auto = True
        I("L_noepoch:")
        I(f"s_lshl_b32 s{sT}, s{sB}, 16\ns_lshl_b32 s{sT2}, s{sG}, 14\ns_add_u32 s{sT}, s{sT}, s{sT2}\ns_lshl_b32 s{sT2}, s{sHL}, 8\ns_add_u32 s{sT}, s{sT}, s{sT2}")
        for k in range(1, 4):
            for r in range(16): I(f"v_add_f32 v{192+r}, v{192+r}, v{S0+16*(k-1)+r}")
        for d in range(8): I(f"v_cvt_pk_bf16_f32 v{vP+d}, v{192+2*d}, v{192+2*d+1}")
        I(f"buffer_store_dwordx4 {vr(vP, 4)}, v8, {srd(OUT)}, s{sT} offen")
        I(f"buffer_store_dwordx4 {vr(vP+4, 4)}, v9, {srd(OUT)}, s{sT} offen")
        self.stamp("out")
        self.write_stamps()
        I("s_endpgm")

def kopen(name): return f".globl {name}\n.p2align 8\n.type {name},@function\n{name}:\n"
def kdesc(name, vgpr, accum, sgpr=102):
    return f""".section .rodata,"a"
.p2align 6
.amdhsa_kernel {name}
  .amdhsa_next_free_vgpr {vgpr}
  .amdhsa_next_free_sgpr {sgpr}
  .amdhsa_accum_offset {accum}
  .amdhsa_group_segment_fixed_size 0
  .amdhsa_kernarg_size 64
  .amdhsa_user_sgpr_count 2
  .amdhsa_user_sgpr_kernarg_segment_ptr 1
  .amdhsa_system_sgpr_workgroup_id_x 1
  .amdhsa_float_denorm_mode_32 3
.end_amdhsa_kernel
"""

def build(cfg):
    g = Gen(cfg); E = g.E
    g.prologue()
    st = Stream(E); g.add_streams(st)
    g.start(st); g.phase_q(st); g.phase_s(st); g.phase_pv(st); g.combine(st); g.wo_phase(st); g.oproj()
    s = "; kernarg: x, k_cache, v_cache, wq, wo, out, debug, ws (8-byte pointers)\n"
    lst = cfg.get("list")
    if lst:
        for n in lst:
            s += f"; @launch kernel={KNAME} grid=(256,1,1) block=(256,1,1) lds=163840\n" if n == "main" else "; @launch kernel=empty_kernel grid=(256,1,1) block=(64,1,1) lds=0\n"
    else:
        s += "; @launch grid=(256,1,1) block=(256,1,1) lds=163840\n"
    if g.names: s += "; stamps: " + " ".join(g.names) + "\n"
    s += '.amdgcn_target "amdgcn-amd-amdhsa--gfx950"\n.text\n' + kopen(KNAME) + E.text() + "\nL_end:\n" + (kopen("empty_kernel") + "s_endpgm\n" + kdesc("empty_kernel", 8, 8) if lst and "empty" in lst else "") + kdesc(KNAME, 512, 256)
    print(E.stats(), "nops", E.nnop, file=sys.stderr)
    return s

if __name__ == "__main__":
    cfg = eval(sys.argv[2]) if len(sys.argv) > 2 else {}
    open(sys.argv[1], "w").write(build(cfg))
```
